```python
import torch

def _softmax(x, axis=-1):
    return torch.softmax(x, dim=axis)
def _gelu(x):
    return torch.nn.functional.gelu(x, approximate="tanh")
def _silu(x):
    return torch.nn.functional.silu(x)
def _sigmoid(x):
    return torch.sigmoid(x)
def _layernorm(x, axis=-1, eps=1e-5):
    m = x.mean(dim=axis, keepdim=True)
    v = x.var(dim=axis, keepdim=True, unbiased=False)
    return (x - m) / torch.sqrt(v + eps)
def _scatter_add(tgt, idx, src, axis=0):
    return tgt.clone().index_add_(axis, idx, src)
def _segment_sum(src, seg, n):
    out = torch.zeros((n,) + src.shape[1:], dtype=src.dtype)
    return out.index_add_(0, seg, src)
def _pad(x, pw):
    flat = tuple(v for pair in reversed(pw) for v in pair)
    return torch.nn.functional.pad(x, flat)

kernel_name = 'standalone__mha_block_cached__near_ridge'

def setup_inputs():

    _w = (lambda a: (lambda t: t.to(torch.bfloat16) if t.is_floating_point() else t)(torch.as_tensor(a)))
    B, Sq, D = 16, 64, 512
    H, Sk, Dh = 32, 64, 128
    return {
        "x": _w((lambda *s: torch.randn(*s, dtype=torch.bfloat16) * 0.8)(B, Sq, D)),
        "k_cache": _w((lambda *s: torch.randn(*s, dtype=torch.bfloat16) * 0.8)(B, H, Sk, Dh)),
        "v_cache": _w((lambda *s: torch.randn(*s, dtype=torch.bfloat16) * 0.05)(B, H, Sk, Dh)),
        "wq": _w((lambda *s: torch.randn(*s, dtype=torch.bfloat16) * 0.8)(D, H * Dh) * (D ** -0.5)),
        "wo": _w((lambda *s: torch.randn(*s, dtype=torch.bfloat16) * 0.05)(H * Dh, D) * ((H * Dh) ** -0.5)),
    }

def reference(x, k_cache, v_cache, wq, wo):
    B, Sq, D = x.shape
    H, Dh = 32, 128
    q = (lambda x, *d: x.permute(*d))((x @ wq).reshape(B, Sq, H, Dh), 0, 2, 1, 3)
    scores = torch.einsum("bhqd,bhkd->bhqk", q, k_cache) * (Dh ** -0.5)
    p = _softmax(scores, axis=-1)
    o = torch.einsum("bhqk,bhkd->bhqd", p, v_cache)
    return (lambda x, *d: x.permute(*d))(o, 0, 2, 1, 3).reshape(B, Sq, H * Dh) @ wo
```

```python
import re

TRANS = ("v_exp_f32", "v_log_f32", "v_rcp_f32", "v_rsq_f32", "v_sqrt_f32", "v_sin_f32", "v_cos_f32", "v_rcp_iflag_f32")

def regs_of(tok):
    tok = tok.strip()
    tok = tok.lstrip("-")
    if tok.startswith("abs(") or tok.startswith("|"):
        tok = tok.strip("|").replace("abs(", "").rstrip(")")
    m = re.fullmatch(r"([vas])(\d+)", tok)
    if m:
        return {(m.group(1), int(m.group(2)))}
    m = re.fullmatch(r"([vas])\[(\d+):(\d+)\]", tok)
    if m:
        return {(m.group(1), i) for i in range(int(m.group(2)), int(m.group(3)) + 1)}
    if tok in ("vcc", "vcc_lo", "vcc_hi"):
        return {("x", "vcc")}
    if tok in ("exec", "exec_lo", "exec_hi"):
        return {("x", "exec")}
    if tok == "m0":
        return {("x", "m0")}
    return set()

class Ins:
    def __init__(self, text):
        self.text = text
        t = text.split(";")[0].strip()
        parts = t.split(None, 1)
        self.op = parts[0]
        rest = parts[1] if len(parts) > 1 else ""
        ops, depth, cur = [], 0, ""
        for ch in rest:
            if ch in "[(":
                depth += 1
            if ch in "])":
                depth -= 1
            if ch == "," and depth == 0:
                ops.append(cur.strip()); cur = ""
            else:
                cur += ch
        if cur.strip():
            ops.append(cur.strip())
        self.mods = ""
        if ops:
            sp = ops[-1].split(None, 1)
            ops[-1] = sp[0]
            if len(sp) > 1:
                self.mods = sp[1]
        self.ops = ops
        op = self.op
        self.is_mfma = op.startswith("v_mfma")
        self.is_valu = op.startswith("v_") and not self.is_mfma
        self.is_salu = op.startswith("s_")
        self.is_ds = op.startswith("ds_")
        self.is_vmem = op.startswith(("buffer_", "global_", "flat_"))
        self.is_trans = op.replace("_e32", "").replace("_e64", "") in TRANS
        self.is_perm = op.startswith("v_permlane")
        self.is_dpp = "_dpp" in op or "row_" in self.mods or "quad_perm" in self.mods
        self.is_rdlane = op.startswith(("v_readfirstlane", "v_readlane"))
        self.ldsdma = self.is_vmem and (re.search(r"\blds\b", self.mods) is not None or "load_lds" in op)
        R = [regs_of(o) for o in ops]
        self.dst, self.src = set(), set()
        self.passes = 0
        self.wide_data = set()
        if self.is_mfma:
            self.dst = R[0]; self.A = R[1]; self.B = R[2]; self.C = R[3]
            self.src = R[1] | R[2] | R[3]
            self.passes = 8 if "32x32" in op else 4
        elif self.is_valu:
            if op.startswith(("v_swap", "v_permlane16_swap", "v_permlane32_swap")):
                self.dst = R[0] | R[1]; self.src = R[0] | R[1]
            elif op.startswith(("v_add_co", "v_sub_co", "v_addc_co", "v_subb_co", "v_mad_u64")):
                self.dst = R[0] | R[1]; self.src = set().union(*R[2:])
            elif op.startswith("v_nop"):
                pass
            else:
                self.dst = R[0]; self.src = set().union(*R[1:]) if len(R) > 1 else set()
                if op.startswith(("v_fmac", "v_pk_fmac", "v_writelane")) or self.is_dpp:
                    self.src |= R[0]
                if op.startswith("v_cndmask") and len(R) == 3:
                    self.src |= {("x", "vcc")}
        elif self.is_ds:
            if op.startswith(("ds_read", "ds_bpermute", "ds_permute", "ds_swizzle")) or "_rtn" in op:
                self.dst = R[0]; self.src = set().union(*R[1:])
            else:
                self.src = set().union(*R)
        elif self.is_vmem:
            if op in ("buffer_inv", "buffer_wbl2"):
                pass
            elif self.ldsdma:
                self.src = set().union(*R) | {("x", "m0")}
            elif "load" in op:
                self.dst = R[0]; self.src = set().union(*R[1:])
            else:
                self.src = set().union(*R)
                if "atomic" in op and "sc0" in self.mods:
                    self.dst = R[0]
                if op.endswith(("x3", "x4")):
                    self.wide_data = R[0] if op.startswith("buffer_") else R[1]
        elif self.is_salu:
            if op.startswith(("s_cmp", "s_cbranch", "s_branch", "s_waitcnt", "s_barrier", "s_nop", "s_endpgm",
                              "s_setprio", "s_sleep", "s_bitcmp")):
                self.src = set().union(*R) if R else set()
            else:
                self.dst = R[0] if R else set(); self.src = set().union(*R[1:]) if len(R) > 1 else set()
                if "saveexec" in op:
                    self.dst |= {("x", "exec")}
        self.states = 1
        if op == "s_nop":
            self.states = int(ops[0], 0) + 1

def need(p, c):
    n = 0
    vreg = lambda s: {r for r in s if r[0] in "va"}
    sreg = lambda s: {r for r in s if r[0] == "s" or r == ("x", "vcc")}
    if p.is_valu:
        if c.is_mfma and vreg(p.dst) & c.src: n = max(n, 2)
        if c.is_perm and vreg(p.dst) & c.src: n = max(n, 2)
        if c.is_dpp and vreg(p.dst) & c.src: n = max(n, 2)
        if c.is_rdlane and vreg(p.dst) & c.src: n = max(n, 1)
        if p.is_trans and c.is_valu and not c.is_trans and p.dst & c.src: n = max(n, 1)
        if p.is_trans and c.is_mfma and p.dst & c.src: n = max(n, 2)
        if c.is_vmem and sreg(p.dst) & c.src: n = max(n, 5)
        if (c.is_valu or c.is_mfma) and sreg(p.dst) & c.src: n = max(n, 4 if c.op.startswith(("v_readlane", "v_writelane")) else 2)
        if ("x", "exec") in p.dst: n = max(n, 5)
    if p.is_mfma:
        big = {4: 8, 8: 12}[p.passes]
        if c.is_mfma:
            if p.dst & (c.A | c.B): n = max(n, big)
            if p.dst & c.C and not (p.dst == c.C and p.passes == c.passes): n = max(n, big - 2)
            if p.dst & c.dst and not (p.dst == c.dst and p.passes == c.passes): n = max(n, big)
        elif c.is_valu or c.is_ds or c.is_vmem:
            if p.dst & (c.src | c.dst): n = max(n, big)
            if c.is_valu and p.C & c.dst: n = max(n, {4: 3, 8: 7}[p.passes])
    if p.is_salu and ("x", "m0") in p.dst and c.ldsdma: n = max(n, 1)
    if p.wide_data and p.wide_data & c.dst: n = max(n, 2)
    return n

class Asm:
    def __init__(self):
        self.lines = []
    def __call__(self, s):
        for l in s.split("\n"):
            l = l.strip()
            if l:
                self.lines.append(l)
    def label(self, name):
        self.lines.append(name + ":")
    def finish(self, verbose=False):
        out, hist = [], []
        pads = 0
        for l in self.lines:
            if l.startswith((";", ".")) or l.endswith(":"):
                out.append(l); continue
            c = Ins(l)
            req, dist = 0, 0
            for p in reversed(hist):
                r = need(p, c) - dist
                if r > req: req = r
                dist += p.states
                if dist >= 20: break
            while req > 0:
                k = min(req, 16)
                nop = Ins(f"s_nop {k-1}")
                out.append("    " + nop.text + "   ; hazard pad"); hist.append(nop); req -= k; pads += k
            out.append("    " + l); hist.append(c)
            if c.op in ("s_branch", "s_endpgm"):
                hist = []
            hist = hist[-24:]
        if verbose:
            print("hazard pad states:", pads)
        return out

def kernel_desc(name, nvgpr, accum, nsgpr=102):
    return [f".amdhsa_kernel {name}", f"  .amdhsa_next_free_vgpr {nvgpr}", f"  .amdhsa_next_free_sgpr {nsgpr}",
            f"  .amdhsa_accum_offset {accum}", "  .amdhsa_group_segment_fixed_size 0", "  .amdhsa_kernarg_size 64",
            "  .amdhsa_user_sgpr_count 2", "  .amdhsa_user_sgpr_kernarg_segment_ptr 1",
            "  .amdhsa_system_sgpr_workgroup_id_x 1", "  .amdhsa_float_denorm_mode_32 3", ".end_amdhsa_kernel"]
```

```python
import sys
from asmlib import *

HEADER = open("standalone__mha_block_cached__near_ridge.s.ref").read().split("; Override")[0].rstrip().split("\n")

sW, sHQ, sBPL, sI, sBP, sH = "s3", "s4", "s5", "s6", "s7", "s8"
SRD = dict(X=32, K=36, V=40, WQ=44, WO=48, OUT=52, WS=56, DBG=60)
PTR = dict(X=16, K=18, V=20, WQ=22, WO=24, OUT=26, DBG=28, WS=30)
SIZE = dict(X=1 << 20, K=8 << 20, V=8 << 20, WQ=4 << 20, WO=4 << 20, OUT=1 << 20, DBG=256, WS=256 << 20)
def srd(n): return f"s[{SRD[n]}:{SRD[n]+3}]"
XB = 49152
KB = [98304, 131072]
VB = [114688, 147456]
WS_P = 8 << 20

def mk_srd(a, names):
    for n in names:
        b, p = SRD[n], PTR[n]
        a(f"s_mov_b32 s{b}, s{p}")
        a(f"s_mov_b32 s{b+1}, s{p+1}")
        a(f"s_mov_b32 s{b+2}, {hex(SIZE[n])}")
        a(f"s_mov_b32 s{b+3}, 0x20000")

def prologue(a, end):
    a("s_cmp_ge_u32 s2, 256")
    a(f"s_cbranch_scc1 {end}")
    a("s_load_dwordx16 s[16:31], s[0:1], 0")
    a("v_lshrrev_b32 v1, 6, v0")
    a("v_and_b32 v0, 63, v0")
    a(f"v_readfirstlane_b32 {sW}, v1")
    a("s_and_b32 s9, s2, 7")
    a("s_lshr_b32 s10, s2, 3")
    a(f"s_and_b32 {sHQ}, s9, 3")
    a("s_lshr_b32 s9, s9, 2")
    a(f"s_lshr_b32 {sBPL}, s10, 3")
    a(f"s_and_b32 {sI}, s10, 7")
    a("s_lshl_b32 s9, s9, 2")
    a(f"s_add_u32 {sBP}, s9, {sBPL}")
    a(f"s_lshl_b32 s9, {sHQ}, 3")
    a(f"s_add_u32 {sH}, s9, {sI}")

class Loader:
    def __init__(self, a):
        self.a = a; self.n = 0; self.end = {}
    def done(self, name, cnt):
        self.n += cnt; self.end[name] = self.n
    def wait(self, name):
        k = self.n - self.end[name]
        assert k <= 63
        self.a(f"s_waitcnt vmcnt({k})")

def kernelA(a, name, kvaux=""):
    end = name + "_end"
    prologue(a, end)
    a(f"s_cmp_ge_u32 {sW}, 4")
    a(f"s_cbranch_scc1 {name}_loader")
    a("v_and_b32 v25, 15, v0")
    a("v_lshrrev_b32 v26, 4, v0")
    a("v_bfe_u32 v27, v0, 2, 2")
    a("v_and_b32 v28, 3, v0")
    a("v_lshl_add_u32 v29, v26, 3, v27")
    a("v_and_b32 v30, 1, v27")
    a("v_lshrrev_b32 v31, 1, v27")
    a("v_lshl_or_b32 v30, v31, 2, v30")
    a("v_and_b32 v31, 1, v26")
    a("v_lshl_or_b32 v30, v31, 3, v30")
    a("v_xor_b32 v30, v30, v28")
    a("v_lshlrev_b32 v30, 4, v30")
    a("v_lshl_add_u32 v30, v29, 8, v30")
    a("v_and_b32 v31, 1, v28")
    a("v_lshl_add_u32 v2, v31, 3, v30")
    for t in range(1, 8):
        a(f"v_xor_b32 v{2+t}, {((t>>1)<<6) | ((t&1)<<3)}, v2")
    a("v_lshrrev_b32 v30, 1, v25")
    a("v_xor_b32 v30, v30, v26")
    a("v_lshlrev_b32 v30, 4, v30")
    a("v_lshl_add_u32 v30, v25, 7, v30")
    a(f"s_lshl_b32 s9, {sW}, 11")
    a(f"s_add_u32 s9, s9, {XB}")
    a("v_add_u32 v10, s9, v30")
    a("v_xor_b32 v11, 64, v10")
    a("v_xor_b32 v30, v26, v25")
    a("v_lshlrev_b32 v30, 4, v30")
    a("v_lshl_add_u32 v30, v25, 8, v30")
    a(f"v_add_u32 v12, {KB[0]}, v30")
    for u in range(1, 4):
        a(f"v_xor_b32 v{12+u}, {u<<6}, v12")
    a("v_lshl_add_u32 v29, v26, 2, v27")
    a("v_and_b32 v30, 7, v29")
    a("v_lshlrev_b32 v30, 1, v30")
    a("v_lshrrev_b32 v31, 1, v28")
    a("v_xor_b32 v30, v30, v31")
    a("v_lshlrev_b32 v30, 4, v30")
    a("v_lshl_add_u32 v30, v29, 8, v30")
    a("v_and_b32 v31, 1, v28")
    a("v_lshl_add_u32 v30, v31, 3, v30")
    a(f"v_add_u32 v16, {VB[0]}, v30")
    for t in range(1, 8):
        a(f"v_xor_b32 v{16+t}, {t<<5}, v16")
    a(f"s_lshl_b32 s9, {sW}, 8")
    a("v_lshl_add_u32 v24, v25, 4, s9")
    a("v_lshl_add_u32 v24, v26, 10, v24")
    a("s_waitcnt lgkmcnt(0)")
    mk_srd(a, ["WS"])
    a(f"s_lshl_b32 s10, {sBP}, 6")
    a(f"s_add_u32 s10, s10, {sH}")
    a("s_lshl_b32 s10, s10, 14")
    ACC = 64
    FA = [128, 168]; FB = [160, 200]
    def reads(s, ks):
        st = ks; slot = s % 3
        L = []
        for b in range(2):
            L.append(f"ds_read_b128 v[{FB[st]+4*b}:{FB[st]+4*b+3}], v{10+ks} offset:{slot*16384 + b*8192}")
        for t in range(8):
            for hf in range(2):
                r = FA[st] + 4*t + 2*hf
                L.append(f"ds_read_b64_tr_b16 v[{r}:{r+1}], v{2+t} offset:{slot*16384 + ks*8192 + hf*1024}")
        return L
    def mfmas(st, first):
        L = []
        for t in range(8):
            for b in range(2):
                d = ACC + (b*8+t)*4
                c = "0" if first else f"v[{d}:{d+3}]"
                L.append(f"v_mfma_f32_16x16x32_bf16 v[{d}:{d+3}], v[{FA[st]+4*t}:{FA[st]+4*t+3}], v[{FB[st]+4*b}:{FB[st]+4*b+3}], {c}")
        return L
    def interleave(M, R, per=2):
        ri = 0
        for m in M:
            a(m)
            for _ in range(per):
                if ri < len(R):
                    a(R[ri]); ri += 1
        while ri < len(R):
            a(R[ri]); ri += 1
    for s in range(8):
        a("s_barrier")
        if s == 0:
            for r in reads(0, 0): a(r)
        else:
            interleave(mfmas(1, False), reads(s, 0))
        a("s_waitcnt lgkmcnt(0)")
        interleave(mfmas(0, s == 0), reads(s, 1))
        a("s_waitcnt lgkmcnt(0)")
    for m in mfmas(1, False): a(m)
    QF = 32
    for b in range(2):
        for t in range(8):
            d = ACC + (b*8+t)*4
            o = QF + b*16 + (t>>1)*4 + (t&1)*2
            a(f"v_cvt_pk_bf16_f32 v{o}, v{d}, v{d+1}")
            a(f"v_cvt_pk_bf16_f32 v{o+1}, v{d+2}, v{d+3}")
    a("s_mov_b32 exec_lo, 0xffff0000")
    a("s_mov_b32 exec_hi, 0xffff0000")
    for f in range(8):
        o = QF + 4*f
        a(f"v_swap_b32 v{o}, v{o+2}")
        a(f"v_swap_b32 v{o+1}, v{o+3}")
    a("s_mov_b64 exec, -1")
    a("s_mov_b32 s11, 0x3e0293ee")
    KF, S, P, VF, OA, OP = 128, 192, 208, 64, 128, 160
    for b in range(2):
        a("s_barrier")
        for u in range(4):
            for t in range(4):
                r = KF + (u*4+t)*4
                a(f"ds_read_b128 v[{r}:{r+3}], v{12+u} offset:{b*32768 + t*4096}")
        for u in range(4):
            a(f"s_waitcnt lgkmcnt({12-4*u})")
            for t in range(4):
                r = KF + (u*4+t)*4; d = S + 4*t; q = QF + b*16 + 4*u
                c = "0" if u == 0 else f"v[{d}:{d+3}]"
                a(f"v_mfma_f32_16x16x32_bf16 v[{d}:{d+3}], v[{r}:{r+3}], v[{q}:{q+3}], {c}")
        a("s_barrier")
        for u in range(2):
            for t in range(8):
                for hf in range(2):
                    r = VF + (u*8+t)*4 + 2*hf
                    a(f"ds_read_b64_tr_b16 v[{r}:{r+1}], v{16+t} offset:{b*32768 + u*8192 + hf*4096}")
        a(f"v_max3_f32 v25, v{S}, v{S+1}, v{S+2}")
        for k in range(3, 15, 2):
            a(f"v_max3_f32 v25, v25, v{S+k}, v{S+k+1}")
        a(f"v_max_f32 v25, v25, v{S+15}")
        a("v_mov_b32 v26, v25")
        a("v_permlane16_swap_b32 v25, v26")
        a("v_max_f32 v25, v25, v26")
        a("v_mov_b32 v26, v25")
        a("v_permlane32_swap_b32 v25, v26")
        a("v_max_f32 v25, v25, v26")
        a("v_mul_f32 v25, s11, v25")
        for k in range(16):
            a(f"v_fma_f32 v{S+k}, v{S+k}, s11, -v25")
        for k in range(16):
            a(f"v_exp_f32 v{S+k}, v{S+k}")
        a(f"v_add_f32 v27, v{S}, v{S+1}")
        a(f"v_add_f32 v28, v{S+2}, v{S+3}")
        for k in range(4, 16, 2):
            a(f"v_add_f32 v27, v27, v{S+k}")
            a(f"v_add_f32 v28, v28, v{S+k+1}")
        a("v_add_f32 v27, v27, v28")
        a("v_mov_b32 v28, v27")
        a("v_permlane16_swap_b32 v27, v28")
        a("v_add_f32 v27, v27, v28")
        a("v_mov_b32 v28, v27")
        a("v_permlane32_swap_b32 v27, v28")
        a("v_add_f32 v27, v27, v28")
        a("v_rcp_f32 v27, v27")
        for k in range(16):
            a(f"v_mul_f32 v{S+k}, v27, v{S+k}")
        for k in range(8):
            a(f"v_cvt_pk_bf16_f32 v{P+k}, v{S+2*k}, v{S+2*k+1}")
        a("s_waitcnt lgkmcnt(0)")
        for u in range(2):
            for t in range(8):
                r = VF + (u*8+t)*4; d = OA + 4*t; p = P + 4*u
                c = "0" if u == 0 else f"v[{d}:{d+3}]"
                a(f"v_mfma_f32_16x16x32_bf16 v[{d}:{d+3}], v[{r}:{r+3}], v[{p}:{p+3}], {c}")
        for k in range(16):
            a(f"v_cvt_pk_bf16_f32 v{OP+k}, v{OA+2*k}, v{OA+2*k+1}")
        for u in range(4):
            a(f"s_add_u32 s12, s10, {b*32*16384 + u*4096}")
            a(f"buffer_store_dwordx4 v[{OP+4*u}:{OP+4*u+3}], v24, {srd('WS')}, s12 offen")
        if b == 0:
            a("s_waitcnt vmcnt(0)")
    a("s_endpgm")
    a.label(f"{name}_loader")
    a(f"s_sub_u32 s9, {sW}, 4")
    a("v_lshrrev_b32 v1, 3, v0")
    a("v_lshrrev_b32 v2, 4, v0")
    a("v_and_b32 v3, 7, v0")
    a("v_and_b32 v4, 15, v0")
    a("v_xor_b32 v5, v3, v2")
    a("v_lshlrev_b32 v5, 4, v5")
    a("v_lshl_add_u32 v5, v1, 10, v5")
    a(f"s_lshl_b32 s10, {sBP}, 17")
    a("s_lshl_b32 s11, s9, 14")
    a("s_add_u32 s10, s10, s11")
    a("v_add_u32 v10, s10, v5")
    a("v_add_u32 v11, 0x2000, v10")
    a("v_xor_b32 v11, 64, v11")
    a("v_and_b32 v5, 1, v2")
    a("v_lshrrev_b32 v6, 1, v2")
    a("v_lshl_or_b32 v5, v6, 2, v5")
    a("v_xor_b32 v5, v5, v4")
    a("v_lshlrev_b32 v5, 4, v5")
    a("v_lshl_add_u32 v5, v2, 13, v5")
    a("s_lshl_b32 s10, s9, 17")
    a(f"s_lshl_b32 s11, {sH}, 8")
    a("s_add_u32 s10, s10, s11")
    a("v_add_u32 v12, s10, v5")
    a("v_xor_b32 v13, 0x80, v12")
    a("v_xor_b32 v5, v4, v2")
    a("v_lshlrev_b32 v5, 4, v5")
    a("v_lshl_add_u32 v5, v2, 8, v5")
    a("s_lshl_b32 s12, s9, 12")
    a("v_add_u32 v14, s12, v5")
    for j in range(1, 4):
        a(f"v_xor_b32 v{14+j}, {j<<6}, v14")
    a("v_lshlrev_b32 v5, 1, v2")
    a("v_xor_b32 v5, v5, v4")
    a("v_lshlrev_b32 v5, 4, v5")
    a("v_lshl_add_u32 v5, v2, 8, v5")
    a("v_add_u32 v18, s12, v5")
    a("v_xor_b32 v19, 0x80, v18")
    a(f"s_lshl_b32 s13, {sBPL}, 1")
    a(f"s_add_u32 s13, s13, {sI}")
    a("s_lshl_b32 s14, s9, 11")
    a(f"s_lshl_b32 s15, {sBP}, 6")
    a(f"s_add_u32 s15, s15, {sH}")
    a("s_lshl_b32 s15, s15, 14")
    a("s_waitcnt lgkmcnt(0)")
    mk_srd(a, ["X", "K", "V", "WQ"])
    ld = Loader(a)
    def issue_S(s):
        slot = s % 3
        a(f"s_add_u32 s64, s13, {s}")
        a("s_and_b32 s64, s64, 7")
        a("s_lshl_b32 s65, s64, 19")
        a("s_lshl_b32 s64, s64, 7")
        for j in range(4):
            a(f"s_add_u32 m0, s12, {slot*16384 + j*1024}")
            if j: a(f"s_add_u32 s65, s65, 32768")
            a(f"buffer_load_dwordx4 v{12 + (j>>1)}, {srd('WQ')}, s65 offen lds")
        for b in range(2):
            for j in range(2):
                a(f"s_add_u32 m0, s14, {XB + slot*16384 + b*8192 + j*1024}")
                if b == 1 and j == 0: a("s_add_u32 s64, s64, 0x10000")
                a(f"buffer_load_dwordx4 v{10+j}, {srd('X')}, s64 offen lds")
        ld.done(f"S{s}", 8)
    def issue_K(b):
        a(f"s_add_u32 m0, s12, {KB[b]}")
        a(f"s_add_u32 s64, s15, {b*32*16384}")
        for j in range(4):
            a(f"buffer_load_dwordx4 v{14+j}, {srd('K')}, s64 offen offset:{j*1024} {kvaux} lds")
        ld.done(f"K{b}", 4)
    def issue_V(b):
        a(f"s_add_u32 m0, s12, {VB[b]}")
        a(f"s_add_u32 s64, s15, {b*32*16384}")
        for j in range(4):
            a(f"buffer_load_dwordx4 v{18+(j&1)}, {srd('V')}, s64 offen offset:{j*1024} {kvaux} lds")
        ld.done(f"V{b}", 4)
    issue_S(0); issue_S(1); issue_S(2)
    for s in range(8):
        ld.wait(f"S{s}"); a("s_barrier")
        if 1 <= s <= 5: issue_S(s+2)
        if s == 5:
            issue_K(0); issue_V(0); issue_K(1); issue_V(1)
    for nm in ("K0", "V0", "K1", "V1"):
        ld.wait(nm); a("s_barrier")
    a.label(end)
    a("s_endpgm")

def kernelB(a, name):
    end = name + "_end"
    prologue(a, end)
    a(f"s_cmp_ge_u32 {sW}, 4")
    a(f"s_cbranch_scc1 {name}_loader")
    a(f"s_lshr_b32 s9, {sW}, 1")
    a(f"s_and_b32 s10, {sW}, 1")
    a("v_bfe_u32 v27, v0, 2, 2")
    a("v_and_b32 v28, 3, v0")
    a("v_bfe_u32 v26, v0, 4, 1")
    a("v_lshrrev_b32 v25, 5, v0")
    a("v_and_b32 v30, 1, v28")
    a("v_lshl_or_b32 v30, v26, 1, v30")
    a("v_lshrrev_b32 v31, 1, v27")
    a("v_xor_b32 v31, s9, v31")
    a("v_lshl_or_b32 v30, v31, 2, v30")
    a("v_lshlrev_b32 v30, 4, v30")
    a("v_lshrrev_b32 v31, 1, v28")
    a("v_lshl_or_b32 v30, v31, 3, v30")
    a("v_lshl_add_u32 v29, v25, 2, v27")
    a("v_lshl_add_u32 v30, v29, 7, v30")
    a("s_lshl_b32 s11, s9, 16")
    a("v_add_u32 v2, s11, v30")
    a("v_xor_b32 v3, 64, v2")
    a("v_and_b32 v30, 31, v0")
    a("s_lshl_b32 s11, s10, 9")
    a("v_lshl_add_u32 v4, v30, 4, s11")
    a("v_lshl_add_u32 v4, v25, 10, v4")
    a(f"s_lshl_b32 s11, {sW}, 12")
    a("s_add_u32 s11, s11, 131072")
    a("v_lshl_add_u32 v5, v0, 4, s11")
    a("v_xor_b32 v6, 0x2000, v5")
    a("v_lshlrev_b32 v7, 4, v0")
    a(f"s_lshl_b32 s12, {sBP}, 6")
    a(f"s_lshl_b32 s11, {sHQ}, 3")
    a("s_add_u32 s12, s12, s11")
    a("s_lshl_b32 s11, s9, 2")
    a("s_add_u32 s12, s12, s11")
    a("s_lshl_b32 s12, s12, 14")
    a(f"s_lshl_b32 s13, {sBP}, 3")
    a(f"s_add_u32 s13, s13, {sI}")
    a("s_lshl_b32 s13, s13, 2")
    a(f"s_add_u32 s13, s13, {sW}")
    a("s_lshl_b32 s13, s13, 2")
    a(f"s_add_u32 s13, s13, {sHQ}")
    a("s_lshl_b32 s13, s13, 12")
    a(f"s_add_u32 s13, s13, {WS_P}")
    a("s_waitcnt lgkmcnt(0)")
    mk_srd(a, ["WS"])
    OF, ACC, WF = 128, 64, 32
    a("s_barrier")
    for b in range(2):
        for k in range(32):
            hl, s = k >> 3, k & 7
            if s % 2 == 0:
                a(f"s_add_u32 s14, s12, {b*32*16384 + hl*16384 + s*2048}")
            a(f"buffer_load_dwordx4 v[{OF+4*k}:{OF+4*k+3}], v4, {srd('WS')}, s14 offen offset:{(s&1)*2048}")
        def wreads(k):
            hl, s = k >> 3, k & 7
            st = k & 1
            for nt in range(2):
                for hf in range(2):
                    r = WF + st*8 + nt*4 + 2*hf
                    off = (hl*128 + 32*(s>>1) + 8*(s&1) + 16*hf)*128
                    a(f"ds_read_b64_tr_b16 v[{r}:{r+1}], v{2+nt} offset:{off}")
        wreads(0)
        for k in range(32):
            st = k & 1
            if k < 31:
                wreads(k+1)
                a(f"s_waitcnt vmcnt({31-k}) lgkmcnt(4)")
            else:
                a("s_waitcnt vmcnt(0) lgkmcnt(0)")
            for nt in range(2):
                d = ACC + 16*nt; r = WF + st*8 + nt*4
                c = "0" if k == 0 else f"v[{d}:{d+15}]"
                a(f"v_mfma_f32_32x32x16_bf16 v[{d}:{d+15}], v[{r}:{r+3}], v[{OF+4*k}:{OF+4*k+3}], {c}")
        for q in range(4):
            a(f"ds_write_b128 v5, v[{ACC+16+4*q}:{ACC+19+4*q}] offset:{b*16384 + q*1024}")
        a("s_waitcnt lgkmcnt(0)")
        a("s_barrier")
        for q in range(4):
            a(f"ds_read_b128 v[{96+4*q}:{99+4*q}], v6 offset:{b*16384 + q*1024}")
        a("s_waitcnt lgkmcnt(0)")
        for r in range(16):
            a(f"v_add_f32 v{96+r}, v{96+r}, v{ACC+r}")
        a(f"s_add_u32 s14, s13, {b*(4<<20)}")
        for q in range(4):
            a(f"buffer_store_dwordx4 v[{96+4*q}:{99+4*q}], v7, {srd('WS')}, s14 offen offset:{q*1024}")
        a("s_waitcnt vmcnt(0)")
    a("s_endpgm")
    a.label(f"{name}_loader")
    a(f"s_sub_u32 s9, {sW}, 4")
    a("v_lshrrev_b32 v1, 3, v0")
    a("v_bfe_u32 v2, v0, 4, 1")
    a("v_and_b32 v3, 7, v0")
    a("v_lshlrev_b32 v2, 2, v2")
    a("v_xor_b32 v3, v3, v2")
    a("v_lshlrev_b32 v3, 4, v3")
    a("v_lshl_add_u32 v3, v1, 10, v3")
    a("s_lshl_b32 s10, s9, 15")
    a(f"s_lshl_b32 s11, {sI}, 7")
    a("s_add_u32 s10, s10, s11")
    a("v_add_u32 v10, s10, v3")
    a("s_lshl_b32 s12, s9, 12")
    a(f"s_lshl_b32 s13, {sHQ}, 20")
    a("s_waitcnt lgkmcnt(0)")
    mk_srd(a, ["WO"])
    for hl in range(8):
        for j in range(4):
            a(f"s_add_u32 m0, s12, {hl*16384 + j*1024}")
            a(f"s_add_u32 s14, s13, {(hl*128 + 8*j)*1024}")
            a(f"buffer_load_dwordx4 v10, {srd('WO')}, s14 offen lds")
    a("s_waitcnt vmcnt(0)")
    a("s_barrier")
    a("s_barrier")
    a("s_barrier")
    a.label(end)
    a("s_endpgm")

def kernelC(a, name):
    end = name + "_end"
    prologue(a, end)
    a("v_lshlrev_b32 v7, 4, v0")
    a(f"s_lshl_b32 s13, {sBP}, 3")
    a(f"s_add_u32 s13, s13, {sI}")
    a("s_lshl_b32 s13, s13, 2")
    a(f"s_add_u32 s13, s13, {sHQ}")
    a("s_lshl_b32 s13, s13, 14")
    a(f"s_add_u32 s13, s13, {WS_P}")
    a(f"s_lshl_b32 s14, {sW}, 22")
    a("s_add_u32 s13, s13, s14")
    a(f"s_lshl_b32 s9, {sBP}, 1")
    a(f"s_add_u32 s9, s9, {sW}")
    a("s_lshl_b32 s9, s9, 16")
    a(f"s_and_b32 s10, {sHQ}, 1")
    a("s_lshl_b32 s10, s10, 15")
    a("s_add_u32 s9, s9, s10")
    a(f"s_lshr_b32 s10, {sHQ}, 1")
    a("s_lshl_b32 s10, s10, 6")
    a("s_add_u32 s9, s9, s10")
    a(f"s_lshl_b32 s10, {sI}, 7")
    a("s_add_u32 s9, s9, s10")
    a("v_and_b32 v2, 31, v0")
    a("v_lshrrev_b32 v3, 5, v0")
    a("v_lshlrev_b32 v2, 10, v2")
    a("v_lshl_add_u32 v2, v3, 4, v2")
    a("s_waitcnt lgkmcnt(0)")
    mk_srd(a, ["WS", "OUT"])
    for src in range(4):
        if src: a("s_add_u32 s13, s13, 4096")
        for q in range(4):
            r = 16 + src*16 + 4*q
            a(f"buffer_load_dwordx4 v[{r}:{r+3}], v7, {srd('WS')}, s13 offen offset:{q*1024}")
    a("s_waitcnt vmcnt(0)")
    for r in range(16):
        a(f"v_add_f32 v{16+r}, v{16+r}, v{32+r}")
        a(f"v_add_f32 v{48+r}, v{48+r}, v{64+r}")
    for r in range(16):
        a(f"v_add_f32 v{16+r}, v{16+r}, v{48+r}")
    for k in range(8):
        a(f"v_cvt_pk_bf16_f32 v{8+k}, v{16+2*k}, v{17+2*k}")
    a(f"buffer_store_dwordx4 v[8:11], v2, {srd('OUT')}, s9 offen")
    a(f"buffer_store_dwordx4 v[12:15], v2, {srd('OUT')}, s9 offen offset:32")
    a.label(end)
    a("s_endpgm")

def build(extra_first=None, kvaux=""):
    ks = [("mha_a_kernel", lambda a, n: kernelA(a, n, kvaux), 512, 163840), ("mha_b_kernel", kernelB, 512, 163840), ("mha_c_kernel", kernelC, 128, 0)]
    if extra_first: ks = [extra_first] + ks
    L = list(HEADER)
    for n, f, blk, lds in ks:
        L.append(f"; @launch kernel={n} grid=(256,1,1) block=({blk},1,1) lds={lds}")
    L += ['.amdgcn_target "amdgcn-amd-amdhsa--gfx950"', ".text"]
    for n, f, blk, lds in ks:
        a = Asm()
        f(a, n)
        L += [f".globl {n}", ".p2align 8", f".type {n},@function", f"{n}:"] + a.finish(verbose=True)
    L += ['.section .rodata,"a"']
    for n, f, blk, lds in ks:
        L += [".p2align 6"] + kernel_desc(n, 256, 256)
    return "\n".join(L) + "\n"

if __name__ == "__main__":
    out = sys.argv[1] if len(sys.argv) > 1 else "standalone__mha_block_cached__near_ridge.s"
    open(out, "w").write(build())
```

```python
from gen_v1 import *
def probe(kind, aux="", spinwg=100):
    def f(a, name):
        end = name + "_end"
        a("s_memtime s[70:71]")
        prologue(a, end)
        if kind == "empty":
            a.label(end); a("s_endpgm"); return
        a("v_lshlrev_b32 v3, 4, v0")
        a("s_waitcnt lgkmcnt(0)")
        mk_srd(a, ["K", "V", "WQ", "X", "WO", "WS"])
        if kind in ("lat", "latws", "1cu"):
            a(f"s_cmp_lg_u32 s2, {spinwg}")
            a(f"s_cbranch_scc1 {end}")
        a("s_memtime s[64:65]")
        if kind == "kv" or kind == "1cu":
            a("s_lshl_b32 s9, s2, 15")
            a(f"s_lshl_b32 s10, {sW}, 13")
            a("s_add_u32 s9, s9, s10")
            for n in ("K", "V"):
                for j in range(8):
                    a(f"s_add_u32 s10, s9, {j*1024}")
                    a(f"buffer_load_dwordx4 v[{16+4*j}:{19+4*j}], v3, {srd(n)}, s10 offen {aux}")
            a("s_waitcnt vmcnt(0)")
        elif kind == "lat":
            a(f"buffer_load_dwordx4 v[16:19], v3, {srd('K')}, 0 offen {aux}")
            a("s_waitcnt vmcnt(0)")
            a("s_memtime s[64:65]")
            for j in range(8):
                a(f"s_mov_b32 s10, {j*4096+65536}")
                a(f"buffer_load_dwordx4 v[16:19], v3, {srd('K')}, s10 offen {aux}")
                a("s_waitcnt vmcnt(0)")
        elif kind == "latws":
            a(f"buffer_load_dwordx4 v[16:19], v3, {srd('WS')}, 0 offen {aux}")
            a("s_waitcnt vmcnt(0)")
            a("s_memtime s[64:65]")
            for j in range(8):
                a(f"s_mov_b32 s10, {j*4096+65536}")
                a(f"buffer_load_dwordx4 v[16:19], v3, {srd('WS')}, s10 offen {aux}")
                a("s_waitcnt vmcnt(0)")
        elif kind == "first":
            for n in ("K", "V", "WQ", "X", "WO"):
                a(f"buffer_load_dwordx4 v[16:19], v3, {srd(n)}, 0 offen {aux}")
                a("s_waitcnt vmcnt(0)")
        elif kind == "ic":
            for j in range(2048):
                a("v_add3_u32 v8, v9, v10, v11")
        elif kind == "pre":
            a("s_mov_b64 s[64:65], s[70:71]")
        a("s_memtime s[66:67]")
        a("s_memrealtime s[68:69]")
        a("s_waitcnt lgkmcnt(0)")
        a(f"s_cmp_lg_u32 s2, {spinwg}")
        a(f"s_cbranch_scc1 {end}")
        a("s_sub_u32 s66, s66, s64")
        a.label(name + "_spin")
        a("s_memrealtime s[72:73]")
        a("s_waitcnt lgkmcnt(0)")
        a("s_sub_u32 s72, s72, s68")
        a("s_cmp_lt_u32 s72, s66")
        a(f"s_cbranch_scc1 {name}_spin")
        a.label(end)
        a("s_endpgm")
    return ("probe_kernel", f, 256, 0)
import os
os.makedirs("probe", exist_ok=True)
for nm, k in dict(empty=probe("empty"), kv=probe("kv"), kvnt=probe("kv", "nt"), lat=probe("lat"), ic=probe("ic"), first=probe("first"),
                  latws=probe("latws"), pre=probe("pre"), onecu=probe("1cu")).items():
    open(f"p_{nm}.s", "w").write(build(extra_first=k))
open("v1_kvnt.s", "w").write(build(kvaux="nt"))
```

```python
from gen_v1 import *
import gen_v1
def first(a, name):
    end = name + "_end"
    a("s_memrealtime s[70:71]")
    prologue(a, end)
    a("s_waitcnt lgkmcnt(0)")
    a("s_cmp_lg_u32 s2, 0")
    a(f"s_cbranch_scc1 {end}")
    mk_srd(a, ["WS"])
    a("v_mov_b32 v1, s70")
    a("v_mov_b32 v2, 0")
    a("s_mov_b32 s9, 0x2000000")
    a(f"buffer_store_dword v1, v2, {srd('WS')}, s9 offen")
    a.label(end); a("s_endpgm")
def last(mult):
    def f(a, name):
        end = name + "_end"
        a("s_memrealtime s[68:69]")
        prologue(a, end)
        a("s_waitcnt lgkmcnt(0)")
        a("s_cmp_lg_u32 s2, 0")
        a(f"s_cbranch_scc1 {end}")
        mk_srd(a, ["WS"])
        a("v_mov_b32 v2, 0")
        a("s_mov_b32 s9, 0x2000000")
        a(f"buffer_load_dword v1, v2, {srd('WS')}, s9 offen")
        a("s_waitcnt vmcnt(0)")
        a("v_readfirstlane_b32 s66, v1")
        a("s_sub_u32 s66, s68, s66")
        a("s_min_u32 s66, s66, 20000")
        a(f"s_mul_i32 s66, s66, {mult}")
        a.label(name + "_spin")
        a("s_memrealtime s[72:73]")
        a("s_waitcnt lgkmcnt(0)")
        a("s_sub_u32 s72, s72, s68")
        a("s_cmp_lt_u32 s72, s66")
        a(f"s_cbranch_scc1 {name}_spin")
        a.label(end); a("s_endpgm")
    return f
def build2(pos_first, pos_last, mult):
    ks = [("mha_a_kernel", kernelA, 512, 163840), ("mha_b_kernel", kernelB, 512, 163840), ("mha_c_kernel", kernelC, 128, 0)]
    ks.insert(pos_last, ("last_kernel", last(mult), 64, 0))
    ks.insert(pos_first, ("first_kernel", first, 64, 0))
    L = list(HEADER)
    for n, f, blk, lds in ks:
        L.append(f"; @launch kernel={n} grid=(256,1,1) block=({blk},1,1) lds={lds}")
    L += ['.amdgcn_target "amdgcn-amd-amdhsa--gfx950"', ".text"]
    for n, f, blk, lds in ks:
        a = Asm(); f(a, n)
        L += [f".globl {n}", ".p2align 8", f".type {n},@function", f"{n}:"] + a.finish()
    L += ['.section .rodata,"a"']
    for n, f, blk, lds in ks:
        L += [".p2align 6"] + kernel_desc(n, 256, 256)
    return "\n".join(L) + "\n"
open("q_all0.s", "w").write(build2(0, 3, 0))
open("q_all10.s", "w").write(build2(0, 3, 10))
open("q_none10.s", "w").write(build2(0, 0, 10))
open("q_a10.s", "w").write(build2(0, 1, 10))
open("q_ab10.s", "w").write(build2(0, 2, 10))
```
